```python
import torch

def _softmax(x, axis=-1):
    return torch.softmax(x, dim=axis)
def _gelu(x):
    return torch.nn.functional.gelu(x, approximate="tanh")
def _silu(x):
    return torch.nn.functional.silu(x)
def _sigmoid(x):
    return torch.sigmoid(x)
def _layernorm(x, axis=-1, eps=1e-5):
    m = x.mean(dim=axis, keepdim=True)
    v = x.var(dim=axis, keepdim=True, unbiased=False)
    return (x - m) / torch.sqrt(v + eps)
def _scatter_add(tgt, idx, src, axis=0):
    return tgt.clone().index_add_(axis, idx, src)
def _segment_sum(src, seg, n):
    out = torch.zeros((n,) + src.shape[1:], dtype=src.dtype)
    return out.index_add_(0, seg, src)
def _pad(x, pw):
    flat = tuple(v for pair in reversed(pw) for v in pair)
    return torch.nn.functional.pad(x, flat)

kernel_name = 'recurrent_scan__ssm_conv_h3__mixer_channel_mlp__prompt'

def setup_inputs():

    _w = (lambda a: (lambda t: t.to(torch.bfloat16) if t.is_floating_point() else t)(torch.as_tensor(a)))
    def _A_setup():
        B, S, D = 1, 2048, 512
        ks = 4
        return {
            "q": _w((lambda *s: torch.randn(*s, dtype=torch.bfloat16) * 0.05)(B, S, D)),
            "k": _w((lambda *s: torch.randn(*s, dtype=torch.bfloat16) * 0.8)(B, S, D)),
            "v": _w((lambda *s: torch.randn(*s, dtype=torch.bfloat16) * 0.8)(B, S, D)),
            "shift_k": _w((lambda *s: torch.randn(*s, dtype=torch.bfloat16) * 0.8)(D, ks) * 0.5),
            "ssm_k": _w((lambda *s: torch.randn(*s, dtype=torch.bfloat16) * 0.8)(D, S) * (1.0 / S ** 0.5)),
            "ssm_D": _w((lambda *s: torch.randn(*s, dtype=torch.bfloat16) * 0.8)(D)),
        }
    _A_in = _A_setup()

    def _B_setup():
        B, S, D, F = 1, 2048, 512, 1792
        return {
            "x": _w((lambda *s: torch.randn(*s, dtype=torch.bfloat16) * 0.05)(B, S, D)),
            "w1": _w((lambda *s: torch.randn(*s, dtype=torch.bfloat16) * 0.8)(D, F) * (D ** -0.5)),
            "b1": _w((lambda *s: torch.randn(*s, dtype=torch.bfloat16) * 0.4)(F)),
            "w2": _w((lambda *s: torch.randn(*s, dtype=torch.bfloat16) * 0.2)(F, D) * (F ** -0.5)),
            "b2": _w((lambda *s: torch.randn(*s, dtype=torch.bfloat16) * 0.2)(D)),
        }
    _B_in = _B_setup()

    return {
        "A_q": _A_in["q"],
        "A_k": _A_in["k"],
        "A_v": _A_in["v"],
        "A_shift_k": _A_in["shift_k"],
        "A_ssm_k": _A_in["ssm_k"],
        "A_ssm_D": _A_in["ssm_D"],
        "B_x": _B_in["x"],
        "B_w1": _B_in["w1"],
        "B_b1": _B_in["b1"],
        "B_w2": _B_in["w2"],
        "B_b2": _B_in["b2"],
    }

def reference(A_q, A_k, A_v, A_shift_k, A_ssm_k, A_ssm_D, B_x, B_w1, B_b1, B_w2, B_b2):
    def _A_ref(q, k, v, shift_k, ssm_k, ssm_D):
        B, S, D = q.shape
        ks = shift_k.shape[-1]
        k_pad = _pad(k, ((0, 0), (ks - 1, 0), (0, 0)))
        k_shift = torch.zeros_like(k)
        for t in range(ks):
            k_shift = k_shift + k_pad[:, t:t + S, :] * shift_k[:, ks - 1 - t][None, None, :]
        kv = k_shift * v
        L = 2 * S
        kv_pad = _pad(kv, ((0, 0), (0, S), (0, 0)))
        kf_pad = _pad(ssm_k, ((0, 0), (0, S)))
        kv_f = (lambda x, axes=(-2,-1): torch.fft.rfft2(x.float(), dim=axes))(kv_pad[:, None, :, :], axes=(1, 2))
        kf_f = (lambda x, axes=(-2,-1): torch.fft.rfft2(x.float(), dim=axes))(kf_pad[:, None, :], axes=(1, 2))
        kf_f = (lambda x, *d: x.permute(*d))(kf_f, 1, 2, 0)
        y_f = kv_f * kf_f[None, :, :, :]
        y = (lambda x, s, axes=(-2,-1): torch.fft.irfft2(x, s=s, dim=axes).to(torch.bfloat16))(y_f, (1, L), axes=(1, 2))[:, 0, :S, :]
        y = y + kv * ssm_D[None, None, :]
        return q * y

    def _B_ref(x, w1, b1, w2, b2):
        y = _layernorm(x, axis=-1)
        h = _gelu(torch.einsum("bsd,df->bsf", y, w1) + b1)
        return torch.einsum("bsf,fd->bsd", h, w2) + b2

    x = A_q
    xn = _layernorm(x, axis=-1)
    s = _A_ref(xn, A_k, A_v, A_shift_k, A_ssm_k, A_ssm_D)
    g = _silu(_B_ref(xn, B_w1, B_b1, B_w2, B_b2))
    return x + s * g
```

```python
class Asm:
    def __init__(self):
        self.lines = []
    def __call__(self, s, *a):
        if a:
            s = s % a
        for ln in s.strip("\n").split("\n"):
            self.lines.append("  " + ln.strip())
    def label(self, name):
        self.lines.append(name + ":")
    def raw(self, s):
        self.lines.append(s)
    def comment(self, s):
        self.lines.append("  ; " + s)
    def text(self):
        return "\n".join(self.lines) + "\n"

def v(i, n=1):
    return "v%d" % i if n == 1 else "v[%d:%d]" % (i, i + n - 1)
def a(i, n=1):
    return "a%d" % i if n == 1 else "a[%d:%d]" % (i, i + n - 1)
def s(i, n=1):
    return "s%d" % i if n == 1 else "s[%d:%d]" % (i, i + n - 1)

class Regs:
    def __init__(self, start=0):
        self.n = start
        self.hi = start
    def alloc(self, n=1, align=1):
        if n > 1 and align < 2:
            align = 2
        self.n = (self.n + align - 1) // align * align
        r = self.n
        self.n += n
        self.hi = max(self.hi, self.n)
        return r
    def mark(self):
        return self.n
    def release(self, m):
        self.n = m

def kernel_header(A, name):
    A.raw(".globl %s" % name)
    A.raw(".p2align 8")
    A.raw(".type %s,@function" % name)
    A.raw("%s:" % name)

def kernel_desc(name, vgpr, agpr=0, sgpr=96):
    acc = (vgpr + 3) // 4 * 4
    if acc < 4:
        acc = 4
    nfv = acc + agpr if agpr else vgpr
    return """.amdhsa_kernel %s
  .amdhsa_next_free_vgpr %d
  .amdhsa_next_free_sgpr %d
  .amdhsa_accum_offset %d
  .amdhsa_group_segment_fixed_size 0
  .amdhsa_kernarg_size 112
  .amdhsa_user_sgpr_count 2
  .amdhsa_user_sgpr_kernarg_segment_ptr 1
  .amdhsa_system_sgpr_workgroup_id_x 1
.end_amdhsa_kernel
""" % (name, nfv, sgpr, acc)

def srd(A, d, base, nbytes):
    A("s_mov_b32 %s, %s", s(d), s(base))
    A("s_and_b32 %s, %s, 0xffff", s(d + 1), s(base + 1))
    A("s_mov_b32 %s, 0x%x", s(d + 2), nbytes)
    A("s_mov_b32 %s, 0x20000", s(d + 3))

def srd_off(A, d, base, off_sgpr_or_imm, nbytes):
    A("s_add_u32 %s, %s, %s", s(d), s(base), off_sgpr_or_imm)
    A("s_addc_u32 %s, %s, 0", s(d + 1), s(base + 1))
    A("s_and_b32 %s, %s, 0xffff", s(d + 1), s(d + 1))
    A("s_mov_b32 %s, 0x%x", s(d + 2), nbytes)
    A("s_mov_b32 %s, 0x20000", s(d + 3))
```

```python
import sys
from dsl import *

KVR = 0x0
HF = 0x200000
YT = 0x900000
ST = 0xB00000
WS_BYTES = 0x10000000

KA_Q, KA_K, KA_V, KA_SK, KA_SSM, KA_D, KA_BX, KA_W1, KA_B1, KA_W2, KA_B2, KA_OUT, KA_DBG, KA_WS = [8 * i for i in range(14)]

def round_pair(A, p, tmp, smask):
    A("v_cvt_pk_bf16_f32 %s, %s, %s", v(tmp), v(p), v(p + 1))
    A("v_lshlrev_b32 %s, 16, %s", v(p), v(tmp))
    A("v_and_b32 %s, %s, %s", v(p + 1), s(smask), v(tmp))

def unpack_pair(A, dst, src, smask):
    A("v_lshlrev_b32 %s, 16, %s", v(dst), v(src))
    A("v_and_b32 %s, %s, %s", v(dst + 1), s(smask), v(src))

def gen_p0(A):
    name = "p0_kernel"
    kernel_header(A, name)
    A("s_cmp_ge_u32 s2, 256")
    A("s_cbranch_scc1 p0_done")
    A("s_load_dwordx4 s[4:7], s[0:1], %d", KA_K)
    A("s_load_dwordx2 s[8:9], s[0:1], %d", KA_SK)
    A("s_load_dwordx2 s[10:11], s[0:1], %d", KA_WS)
    R = Regs(1)
    vl = R.alloc(); vt = R.alloc(); vd = R.alloc(); vtb = R.alloc()
    vh = R.alloc(); v0_ = R.alloc(); v1_ = R.alloc(); vsk = R.alloc(); vst = R.alloc()
    A("s_lshr_b32 s3, s2, 3")
    A("s_and_b32 s12, s2, 7")
    A("s_mov_b32 s13, 0xffff0000")
    SM = 13
    A("v_and_b32 %s, 63, v0", v(vl))
    A("v_lshrrev_b32 %s, 6, v0", v(vt))
    A("v_and_b32 %s, 7, v0", v(vd))
    A("v_lshlrev_b32 %s, 1, %s", v(vd), v(vd))
    A("v_lshl_add_u32 %s, %s, 4, %s", v(vd), v(vt), v(vd))
    A("s_lshl_b32 s14, s12, 6")
    A("v_add_u32 %s, s14, %s", v(vd), v(vd))
    A("v_lshrrev_b32 %s, 3, %s", v(vtb), v(vl))
    A("v_lshlrev_b32 %s, 3, %s", v(vtb), v(vtb))
    A("s_lshl_b32 s14, s3, 6")
    A("v_add_u32 %s, s14, %s", v(vtb), v(vtb))
    A("v_lshlrev_b32 %s, 10, %s", v(v0_), v(vtb))
    A("v_lshl_add_u32 %s, %s, 1, %s", v(v0_), v(vd), v(v0_))
    A("v_add_u32 %s, 0x1000, %s", v(v1_), v(v0_))
    A("v_subrev_u32 %s, 0xc00, %s", v(vh), v(v0_))
    A("v_lshlrev_b32 %s, 3, %s", v(vsk), v(vd))
    A("v_lshlrev_b32 %s, 12, %s", v(vst), v(vd))
    A("v_sub_u32 %s, 2040, %s", v(vt), v(vtb))
    A("v_lshl_add_u32 %s, %s, 1, %s", v(vst), v(vt), v(vst))
    A("s_waitcnt lgkmcnt(0)")
    srd(A, 16, 4, 0x200000)
    srd(A, 20, 6, 0x200000)
    srd(A, 24, 8, 4096)
    srd(A, 28, 10, 0x200000)
    kr = R.alloc(11, 2); vr = R.alloc(8, 2); skr = R.alloc(4, 4)
    A("buffer_load_dwordx4 %s, %s, s[24:27], 0 offen", v(skr, 4), v(vsk))
    for i in range(3):
        A("buffer_load_dword %s, %s, s[16:19], 0 offen offset:%d", v(kr + i), v(vh), 1024 * i)
    for i in range(8):
        A("buffer_load_dword %s, %s, s[16:19], 0 offen offset:%d", v(kr + 3 + i), v(v0_ if i < 4 else v1_), 1024 * (i & 3))
    for i in range(8):
        A("buffer_load_dword %s, %s, s[20:23], 0 offen offset:%d", v(vr + i), v(v0_ if i < 4 else v1_), 1024 * (i & 3))
    SK = R.alloc(8, 2)
    KF = R.alloc(22, 2)
    A("s_waitcnt vmcnt(19)")
    for j in range(4):
        for c in range(2):
            src = skr + 2 * c + (j >> 1)
            if j & 1:
                A("v_and_b32 %s, %s, %s", v(SK + 2 * j + c), s(SM), v(src))
            else:
                A("v_lshlrev_b32 %s, 16, %s", v(SK + 2 * j + c), v(src))
    A("s_waitcnt vmcnt(8)")
    for i in range(11):
        unpack_pair(A, KF + 2 * i, kr + i, SM)
    KV = R.alloc(16, 2)
    P = R.alloc(2, 2); tmp = R.alloc(); VF = R.alloc(2, 2)
    A("s_waitcnt vmcnt(0)")
    for i in range(8):
        acc = KV + 2 * i
        A("v_pk_mul_f32 %s, %s, %s", v(acc, 2), v(KF + 2 * i, 2), v(SK + 6, 2))
        round_pair(A, acc, tmp, SM)
        for j in (2, 1, 0):
            A("v_pk_mul_f32 %s, %s, %s", v(P, 2), v(KF + 2 * (i + 3 - j), 2), v(SK + 2 * j, 2))
            round_pair(A, P, tmp, SM)
            A("v_pk_add_f32 %s, %s, %s", v(acc, 2), v(acc, 2), v(P, 2))
            round_pair(A, acc, tmp, SM)
        unpack_pair(A, VF, vr + i, SM)
        A("v_pk_mul_f32 %s, %s, %s", v(acc, 2), v(acc, 2), v(VF, 2))
    O = R.alloc(8, 4)
    for c in range(2):
        for q in range(4):
            A("v_cvt_pk_bf16_f32 %s, %s, %s", v(O + 4 * c + q), v(KV + 2 * (7 - 2 * q) + c), v(KV + 2 * (6 - 2 * q) + c))
    A("v_add_u32 %s, 0x1000, %s", v(vt), v(vst))
    A("buffer_store_dwordx4 %s, %s, s[28:31], 0 offen", v(O, 4), v(vst))
    A("buffer_store_dwordx4 %s, %s, s[28:31], 0 offen", v(O + 4, 4), v(vt))
    A.label("p0_done")
    A("s_endpgm")
    return kernel_desc(name, R.hi, 0, 40)

G1_LDS = 16 * 7168 + 4 * 512
def gen_g1(A):
    name = "g1_kernel"
    kernel_header(A, name)
    A("s_cmp_ge_u32 s2, 256")
    A("s_cbranch_scc1 g1_done")
    A("s_load_dwordx2 s[4:5], s[0:1], %d", KA_Q)
    A("s_load_dwordx4 s[8:11], s[0:1], %d", KA_W1)
    A("s_load_dwordx2 s[6:7], s[0:1], %d", KA_WS)
    R = Regs(1)
    vl = R.alloc(); t0 = R.alloc(); t1 = R.alloc(); t2 = R.alloc(); t3 = R.alloc()
    A("v_lshrrev_b32 %s, 6, v0", v(t0))
    A("v_and_b32 %s, 63, v0", v(vl))
    A("v_readfirstlane_b32 s12, %s", v(t0))
    A("s_and_b32 s13, s2, 7")
    A("s_lshr_b32 s14, s2, 3")
    A("s_lshr_b32 s15, s13, 1")
    A("s_lshl_b32 s15, s15, 2")
    A("s_and_b32 s3, s14, 3")
    A("s_add_u32 s15, s15, s3")
    A("s_and_b32 s13, s13, 1")
    A("s_lshl_b32 s13, s13, 3")
    A("s_lshr_b32 s14, s14, 2")
    A("s_add_u32 s14, s14, s13")
    SW, SFT, SMT = 12, 14, 15
    wa = R.alloc(7)
    A("s_mov_b32 s3, 4682")
    A("s_mov_b32 s13, 3584")
    for n in range(7):
        A("v_add_u32 %s, %d, %s", v(t0), 64 * n, v(vl))
        A("v_mul_u32_u24 %s, s3, %s", v(t1), v(t0))
        A("v_lshrrev_b32 %s, 16, %s", v(t1), v(t1))
        A("v_mul_u32_u24 %s, 14, %s", v(t2), v(t1))
        A("v_sub_u32 %s, %s, %s", v(t2), v(t0), v(t2))
        A("v_and_b32 %s, 0x13, %s", v(t0), v(t1))
        A("v_and_b32 %s, 4, %s", v(t3), v(t1))
        A("v_lshl_or_b32 %s, %s, 1, %s", v(t0), v(t3), v(t0))
        A("v_and_b32 %s, 8, %s", v(t3), v(t1))
        A("v_lshrrev_b32 %s, 1, %s", v(t3), v(t3))
        A("v_or_b32 %s, %s, %s", v(t0), v(t3), v(t0))
        A("v_mul_u32_u24 %s, s13, %s", v(t0), v(t0))
        A("v_lshl_add_u32 %s, %s, 4, %s", v(wa + n), v(t2), v(t0))
    xa = R.alloc(2)
    A("v_and_b32 %s, 15, %s", v(t0), v(vl))
    A("s_lshl_b32 s3, %s, 7", s(SMT))
    A("s_lshl_b32 s13, %s, 5", s(SW))
    A("s_add_u32 s3, s3, s13")
    A("s_mov_b32 s40, s3")
    A("v_add_u32 %s, s3, %s", v(t0), v(t0))
    A("v_lshlrev_b32 %s, 10, %s", v(t0), v(t0))
    A("v_lshrrev_b32 %s, 4, %s", v(t1), v(vl))
    A("v_lshl_add_u32 %s, %s, 4, %s", v(xa), v(t1), v(t0))
    A("v_add_u32 %s, 0x4000, %s", v(xa + 1), v(xa))
    ra = R.alloc(2)
    A("v_lshrrev_b32 %s, 5, %s", v(t0), v(vl))
    A("v_lshlrev_b32 %s, 4, %s", v(t0), v(t0))
    A("v_bfe_u32 %s, %s, 4, 1", v(t2), v(vl))
    A("v_lshl_add_u32 %s, %s, 2, %s", v(t0), v(t2), v(t0))
    A("v_bfe_u32 %s, %s, 2, 2", v(t2), v(vl))
    A("v_add_u32 %s, %s, %s", v(t0), v(t2), v(t0))
    A("v_mul_u32_u24 %s, 224, %s", v(t0), v(t0))
    A("v_and_b32 %s, 3, %s", v(t2), v(vl))
    A("v_lshl_add_u32 %s, %s, 3, %s", v(ra), v(t2), v(t0))
    A("v_add_u32 %s, %d, %s", v(ra + 1), 8 * 7168, v(ra))
    A("s_waitcnt lgkmcnt(0)")
    srd(A, 16, 4, 0x200000)
    srd(A, 20, 8, 512 * 3584)
    srd(A, 24, 10, 3584)
    srd(A, 28, 6, WS_BYTES)
    A("s_mul_i32 s32, %s, 224", s(SFT))
    A("s_mul_i32 s33, %s, 114688", s(SW))
    A("s_add_u32 s32, s32, s33")
    A("s_mul_i32 s33, %s, 7168", s(SW))
    X = R.alloc(128, 4)
    for c in range(4):
        for n in range(7):
            A("s_add_u32 m0, s33, %d", c * 4 * 7168 + n * 1024)
            if n == 0 and c > 0:
                A("s_add_u32 s32, s32, %d", 4 * 114688)
            else:
                A("s_nop 0")
            A("buffer_load_dwordx4 %s, s[20:23], s32 offen lds", v(wa + n))
        for ss in range(4):
            sidx = 4 * c + ss
            for tt in range(2):
                A("buffer_load_dwordx4 %s, %s, s[16:19], 0 offen offset:%d", v(X + (2 * sidx + tt) * 4, 4), v(xa + tt), sidx * 64)
    ba = R.alloc()
    A("v_lshrrev_b32 %s, 4, %s", v(t0), v(vl))
    A("v_lshlrev_b32 %s, 3, %s", v(ba), v(t0))
    A("s_mul_i32 s34, %s, 224", s(SFT))
    W = R.alloc(28, 4)
    B1 = W
    ACC = R.alloc(56, 4)
    SUM = R.alloc(4)
    ONES = R.alloc(4, 4)
    for i in range(4):
        A("v_mov_b32 %s, 0", v(SUM + i))
        A("v_mov_b32 %s, 0x3f803f80", v(ONES + i))
    A("s_mov_b32 s35, 0x3f803f80")
    for i in range(28):
        A("v_accvgpr_write_b32 %s, 0", a(i))

    def rd(sidx, j):
        base = ra + (sidx >> 3)
        off = (sidx & 7) * 7168 + j * 32
        A("ds_read_b64_tr_b16 %s, %s offset:%d", v(W + 4 * j, 2), v(base), off)
        A("ds_read_b64_tr_b16 %s, %s offset:%d", v(W + 4 * j + 2, 2), v(base), off + 1792)

    A("s_waitcnt vmcnt(45)")
    A("s_barrier")
    for j in range(7):
        rd(0, j)
    for sidx in range(16):
        if sidx % 4 == 3 and sidx < 15:
            c = sidx // 4 + 1
            A("s_waitcnt vmcnt(%d)", 15 * (3 - c))
            A("s_barrier")
        A("s_cmp_lg_u32 %s, %d", s(SW), sidx & 3)
        A("s_cbranch_scc1 g1_cs%d", sidx)
        A("s_waitcnt lgkmcnt(0)")
        for j in range(7):
            A("v_mfma_f32_16x16x32_bf16 %s, %s, %s, %s", a(4 * j, 4), v(W + 4 * j, 4), v(ONES, 4), a(4 * j, 4))
        A.label("g1_cs%d" % sidx)
        last = sidx == 15
        dots = []
        for tt in range(2):
            for q in range(4):
                r = X + (2 * sidx + tt) * 4 + q
                dots.append("v_dot2c_f32_bf16 %s, s35, %s" % (v(SUM + tt), v(r)))
                dots.append("v_dot2c_f32_bf16 %s, %s, %s" % (v(SUM + 2 + tt), v(r), v(r)))
        for j in range(7):
            if j == 0:
                A("s_waitcnt lgkmcnt(8)")
            elif j == 3:
                A("s_waitcnt lgkmcnt(%d)", 4 if last else 10)
            elif j == 5:
                A("s_waitcnt lgkmcnt(%d)", 0 if last else 10)
            for tt in range(2):
                acc = ACC + (2 * j + tt) * 4
                A("v_mfma_f32_16x16x32_bf16 %s, %s, %s, %s", v(acc, 4), v(W + 4 * j, 4), v(X + (2 * sidx + tt) * 4, 4), "0" if sidx == 0 else v(acc, 4))
                A(dots.pop(0))
            if not last:
                rd(sidx + 1, j)
            if j < 2:
                A(dots.pop(0))
        assert not dots
    for j in range(7):
        A("buffer_load_dwordx2 %s, %s, s[24:27], s34 offen offset:%d", v(B1 + 2 * j, 2), v(ba), 32 * j)
    CS = 16 * 7168
    A("v_lshrrev_b32 %s, 4, %s", v(t0), v(vl))
    A("v_lshlrev_b32 %s, 4, %s", v(t0), v(t0))
    A("s_lshl_b32 s3, %s, 9", s(SW))
    A("s_add_u32 s3, s3, %d", CS)
    A("v_add_u32 %s, s3, %s", v(t1), v(t0))
    A("v_add_u32 %s, %d, %s", v(t0), CS, v(t0))
    A("s_nop 4")
    for j in range(7):
        A("ds_write_b128 %s, %s offset:%d", v(t1), a(4 * j, 4), 64 * j)
    R1 = Regs(X + 112); R2 = Regs(W + 14)
    T = R1.alloc(4)
    for i in range(4):
        A("v_mov_b32 %s, %s", v(T + i), v(SUM + i))
    A("s_nop 1")
    for i in range(4):
        A("v_permlane32_swap_b32 %s, %s", v(T + i), v(SUM + i))
    A("s_nop 1")
    for i in range(4):
        A("v_add_f32 %s, %s, %s", v(SUM + i), v(SUM + i), v(T + i))
    for i in range(4):
        A("v_mov_b32 %s, %s", v(T + i), v(SUM + i))
    A("s_nop 1")
    for i in range(4):
        A("v_permlane16_swap_b32 %s, %s", v(T + i), v(SUM + i))
    A("s_nop 1")
    for i in range(4):
        A("v_add_f32 %s, %s, %s", v(SUM + i), v(SUM + i), v(T + i))
    A("s_waitcnt lgkmcnt(0)")
    A("s_barrier")
    CB = X
    for w in range(4):
        for j in range(7):
            A("ds_read_b128 %s, %s offset:%d", v(CB + (w * 7 + j) * 4, 4), v(t0), w * 512 + j * 64)
    A("s_mov_b32 s36, 0x3b000000")
    A("s_mov_b32 s37, 0x3727c5ac")
    A("s_mov_b32 s38, 0xffff0000")
    SM = 38
    AS = R1.alloc(4, 2)
    MU = R1.alloc(2, 2); VAR = R1.alloc(2, 2); MB = R1.alloc(2, 2); SD = R1.alloc(2, 2); U = R2.alloc(2, 2); tmp = R.alloc()
    for tt in range(2):
        A("v_mul_f32 %s, s36, %s", v(MU + tt), v(SUM + tt))
        A("v_mul_f32 %s, s36, %s", v(VAR + tt), v(SUM + 2 + tt))
    for tt in range(2):
        A("v_fma_f32 %s, -%s, %s, %s", v(VAR + tt), v(MU + tt), v(MU + tt), v(VAR + tt))
        A("v_max_f32 %s, 0, %s", v(VAR + tt), v(VAR + tt))
        A("v_mov_b32 %s, %s", v(MB + tt), v(MU + tt))
        A("v_mov_b32 %s, %s", v(SD + tt), v(VAR + tt))
    round_pair(A, MB, tmp, SM)
    round_pair(A, SD, tmp, SM)
    for tt in range(2):
        A("v_add_f32 %s, s37, %s", v(SD + tt), v(SD + tt))
    round_pair(A, SD, tmp, SM)
    for tt in range(2):
        A("v_sqrt_f32 %s, %s", v(SD + tt), v(SD + tt))
    A("s_nop 0")
    round_pair(A, SD, tmp, SM)
    RS = R2.alloc(2, 2)
    for tt in range(2):
        A("v_rcp_f32 %s, %s", v(RS + tt), v(SD + tt))
    A("s_nop 0")
    for tt in range(2):
        A("v_mul_f32 %s, %s, %s", v(U + tt), v(VAR + tt), v(RS + tt))
    for tt in range(2):
        A("v_mul_f32 %s, %s, %s", v(U + tt), v(U + tt), v(RS + tt))
    round_pair(A, U, tmp, SM)
    for tt in range(2):
        A("v_add_f32 %s, s37, %s", v(U + tt), v(U + tt))
    round_pair(A, U, tmp, SM)
    for tt in range(2):
        A("v_sqrt_f32 %s, %s", v(U + tt), v(U + tt))
    A("s_nop 0")
    round_pair(A, U, tmp, SM)
    for tt in range(2):
        A("v_rcp_f32 %s, %s", v(U + tt), v(U + tt))
    A("s_nop 0")
    for tt in range(2):
        A("v_mul_f32 %s, %s, %s", v(AS + 2 * tt), v(U + tt), v(RS + tt))
    for tt in range(2):
        A("v_mul_f32 %s, -%s, %s", v(AS + 2 * tt + 1), v(AS + 2 * tt), v(MU + tt))
    A("s_cmp_lg_u32 %s, 0", s(SFT))
    A("s_cbranch_scc1 g1_nostat")
    A("v_add_u32 %s, s40, %s", v(t1), v(vl))
    A("v_lshlrev_b32 %s, 3, %s", v(t1), v(t1))
    A("v_add_u32 %s, 0x%x, %s", v(t1), ST, v(t1))
    A("v_cmp_gt_u32 vcc, 16, %s", v(vl))
    SP = R2.alloc(4, 2)
    for tt in range(2):
        A("v_mov_b32 %s, %s", v(SP + 2 * tt), v(MB + tt))
        A("v_mov_b32 %s, %s", v(SP + 2 * tt + 1), v(RS + tt))
    A("s_and_saveexec_b64 s[42:43], vcc")
    for tt in range(2):
        A("buffer_store_dwordx2 %s, %s, s[28:31], 0 offen offset:%d", v(SP + 2 * tt, 2), v(t1), 128 * tt)
    A("s_mov_b64 exec, s[42:43]")
    A.label("g1_nostat")
    A("s_waitcnt lgkmcnt(0)")
    for w in range(1, 4):
        for i in range(0, 28, 2):
            A("v_pk_add_f32 %s, %s, %s", v(CB + i, 2), v(CB + i, 2), v(CB + w * 28 + i, 2))
    BF = CB + 28
    A("s_waitcnt vmcnt(0)")
    for i in range(14):
        unpack_pair(A, BF + 2 * i, B1 + i, SM)
    import math, struct
    kk = -2.0 * math.log2(math.e) * math.sqrt(2.0 / math.pi)
    f2u = lambda x: struct.unpack("<I", struct.pack("<f", x))[0]
    A("s_mov_b32 s44, 0x%x", f2u(kk)); A("s_mov_b32 s45, 0x%x", f2u(kk))
    A("s_mov_b32 s46, 0x%x", f2u(kk * 0.044715)); A("s_mov_b32 s47, 0x%x", f2u(kk * 0.044715))
    K0 = R2.alloc(2, 2)
    assert R1.n <= X + 128 and R2.n <= W + 28
    A("v_mov_b32 %s, s44", v(K0)); A("v_mov_b32 %s, s44", v(K0 + 1))
    HP = CB + 56
    Z = CB + 88
    for tt in range(2):
        for j in range(7):
            for hh in range(2):
                acc = ACC + (2 * j + tt) * 4 + 2 * hh
                z = Z + 2 * ((2 * j + hh) & 3) * 2 // 2
                z = Z + 2 * ((2 * j + hh) & 3)
                A("v_pk_fma_f32 %s, %s, %s, %s op_sel:[0,1,0] op_sel_hi:[1,1,1]", v(z, 2), v(CB + 4 * j + 2 * hh, 2), v(AS + 2 * tt, 2), v(BF + 4 * j + 2 * hh, 2))
                A("v_pk_fma_f32 %s, %s, %s, %s op_sel:[0,0,0] op_sel_hi:[1,0,1]", v(acc, 2), v(acc, 2), v(AS + 2 * tt, 2), v(z, 2))
                A("v_pk_mul_f32 %s, %s, %s", v(z, 2), v(acc, 2), v(acc, 2))
                A("v_pk_fma_f32 %s, %s, s[46:47], %s", v(z, 2), v(z, 2), v(K0, 2))
                A("v_pk_mul_f32 %s, %s, %s", v(z, 2), v(z, 2), v(acc, 2))
                A("v_exp_f32 %s, %s", v(z), v(z))
                A("v_exp_f32 %s, %s", v(z + 1), v(z + 1))
                A("s_nop 0")
                A("v_pk_add_f32 %s, %s, 1.0 op_sel_hi:[1,0]", v(z, 2), v(z, 2))
                A("v_rcp_f32 %s, %s", v(z), v(z))
                A("v_rcp_f32 %s, %s", v(z + 1), v(z + 1))
                A("s_nop 0")
                A("v_pk_mul_f32 %s, %s, %s", v(z, 2), v(z, 2), v(acc, 2))
                A("v_cvt_pk_bf16_f32 %s, %s, %s", v(HP + tt * 16 + 2 * j + hh + 2), v(z), v(z + 1))
    A("v_lshlrev_b32 %s, 4, %s", v(t1), v(vl))
    A("s_lshr_b32 s3, s40, 4")
    A("s_mul_i32 s3, s3, 57344")
    A("s_add_u32 s3, s3, 0x%x", HF)
    A("s_mul_i32 s13, %s, 7", s(SFT))
    A("s_lshr_b32 s13, s13, 1")
    A("s_lshl_b32 s13, s13, 10")
    A("s_add_u32 s3, s3, s13")
    A("s_add_u32 s13, s3, 57344")
    A("s_and_b32 s39, %s, 1", s(SFT))
    A("s_cbranch_scc1 g1_odd")
    for tt in range(2):
        so = "s3" if tt == 0 else "s13"
        for p in range(3):
            A("buffer_store_dwordx4 %s, %s, s[28:31], %s offen offset:%d", v(HP + tt * 16 + 2 + 4 * p, 4), v(t1), so, 1024 * p)
        A("buffer_store_dwordx2 %s, %s, s[28:31], %s offen offset:%d", v(HP + tt * 16 + 14, 2), v(t1), so, 3072)
    A("s_endpgm")
    A.label("g1_odd")
    for tt in range(2):
        so = "s3" if tt == 0 else "s13"
        A("buffer_store_dwordx2 %s, %s, s[28:31], %s offen offset:8", v(HP + tt * 16 + 2, 2), v(t1), so)
        for p in range(3):
            A("buffer_store_dwordx4 %s, %s, s[28:31], %s offen offset:%d", v(HP + tt * 16 + 4 + 4 * p, 4), v(t1), so, 1024 * (p + 1))
    A.label("g1_done")
    A("s_endpgm")
    assert R.hi <= 256, R.hi
    return kernel_desc(name, 256, 28, 64)

CV_A = 1156 * 16
CV_B = 640 * 16
CV_CH = CV_A + CV_B
CV_X = 2 * CV_CH
CV_LDS = CV_X + 4 * 4096
def gen_cv(A):
    name = "cv_kernel"
    kernel_header(A, name)
    A("s_cmp_ge_u32 s2, 256")
    A("s_cbranch_scc1 cv_done")
    A("s_load_dwordx4 s[4:7], s[0:1], %d", KA_SSM)
    A("s_load_dwordx2 s[8:9], s[0:1], %d", KA_WS)
    R = Regs(1)
    vl = R.alloc(); t0 = R.alloc(); t1 = R.alloc(); t2 = R.alloc(); t3 = R.alloc()
    A("v_lshrrev_b32 %s, 6, v0", v(t0))
    A("v_and_b32 %s, 63, v0", v(vl))
    A("v_readfirstlane_b32 s12, %s", v(t0))
    A("s_nop 3")
    A("s_lshr_b32 s13, s12, 1")
    A("s_and_b32 s14, s12, 1")
    A("s_and_b32 s15, s2, 7")
    A("s_lshl_b32 s15, s15, 6")
    A("s_lshr_b32 s3, s2, 3")
    A("s_lshl_b32 s3, s3, 1")
    A("s_add_u32 s15, s15, s3")
    A("s_add_u32 s15, s15, s13")
    A("s_lshl_b32 s32, s15, 12")
    A("s_mul_i32 s33, s13, %d", CV_CH)
    SW, SCH, SHF, SD_, SROW, SLB = 12, 13, 14, 15, 32, 33
    A("s_waitcnt lgkmcnt(0)")
    srd_off(A, 16, 4, s(SROW), 4096)
    srd_off(A, 20, 8, s(SROW), 4096)
    srd(A, 24, 6, 1024)
    srd(A, 28, 8, WS_BYTES)
    A("s_lshl_b32 s3, %s, 9", s(SHF))
    A("v_lshl_add_u32 %s, %s, 3, s3", v(t0), v(vl))
    A("s_lshl_b32 s34, %s, 10", s(SHF))
    A("s_add_u32 s34, s34, %s", s(SLB))
    A("s_add_u32 s34, s34, %d", CV_A)
    for i in range(5):
        A("s_add_u32 m0, s34, %d", 2048 * i)
        A("s_mov_b32 s35, %d", 1024 * i)
        A("buffer_load_dwordx4 %s, s[20:23], s35 offen lds", v(t0))
    A("v_and_b32 %s, 7, %s", v(t0), v(vl))
    A("v_lshlrev_b32 %s, 1, %s", v(t0), v(t0))
    A("v_bfe_u32 %s, %s, 3, 1", v(t1), v(vl))
    A("v_or_b32 %s, %s, %s", v(t0), v(t0), v(t1))
    A("v_and_b32 %s, 48, %s", v(t1), v(vl))
    A("v_or_b32 %s, %s, %s", v(t0), v(t0), v(t1))
    A("s_lshl_b32 s3, %s, 6", s(SHF))
    A("v_add_u32 %s, s3, %s", v(t0), v(t0))
    ga = R.alloc(); gp = R.alloc(); la = R.alloc()
    A("v_lshlrev_b32 %s, 4, %s", v(ga), v(t0))
    A("v_subrev_u32 %s, 8, %s", v(gp), v(ga))
    HR = R.alloc(12, 2)
    gp2 = R.alloc()
    A("v_add_u32 %s, 2048, %s", v(gp2), v(gp))
    for rd_ in range(2):
        A("buffer_load_dwordx2 %s, %s, s[16:19], 0 offen", v(HR + 6 * rd_, 2), v(gp if rd_ == 0 else gp2))
        A("buffer_load_dwordx4 %s, %s, s[16:19], 0 offen offset:%d", v(HR + 6 * rd_ + 2, 4), v(ga), 2048 * rd_)
    DV = R.alloc()
    A("s_lshl_b32 s3, %s, 1", s(SD_))
    A("v_mov_b32 %s, s3", v(t1))
    A("buffer_load_ushort %s, %s, s[24:27], 0 offen", v(DV), v(t1))
    A("v_bfe_u32 %s, %s, 1, 2", v(t1), v(t0))
    A("s_mov_b32 s3, 289")
    A("v_mul_u32_u24 %s, s3, %s", v(t1), v(t1))
    A("v_and_b32 %s, 1, %s", v(t2), v(t0))
    A("s_mov_b32 s3, 144")
    A("v_mad_u32_u24 %s, %s, s3, %s", v(t1), v(t2), v(t1))
    A("v_lshrrev_b32 %s, 3, %s", v(t2), v(t0))
    A("v_lshl_add_u32 %s, %s, 2, %s", v(t1), v(t2), v(t1))
    A("v_add_u32 %s, 12, %s", v(t1), v(t1))
    A("v_lshlrev_b32 %s, 4, %s", v(t1), v(t1))
    A("v_add_u32 %s, %s, %s", v(la), s(SLB), v(t1))
    Z = R.alloc(4, 4)
    for i in range(4):
        A("v_mov_b32 %s, 0", v(Z + i))
    A("s_lshl_b32 s3, %s, 6", s(SHF))
    A("v_add_u32 %s, s3, %s", v(t1), v(vl))
    A("s_mov_b32 s3, 5462")
    A("v_mul_u32_u24 %s, s3, %s", v(t2), v(t1))
    A("v_lshrrev_b32 %s, 16, %s", v(t2), v(t2))
    A("v_mul_u32_u24 %s, 12, %s", v(t3), v(t2))
    A("v_sub_u32 %s, %s, %s", v(t3), v(t1), v(t3))
    A("v_cmp_gt_u32 vcc, 96, %s", v(t1))
    A("v_lshrrev_b32 %s, 1, %s", v(t1), v(t2))
    A("s_mov_b32 s3, 289")
    A("v_mad_u32_u24 %s, %s, s3, %s", v(t3), v(t1), v(t3))
    A("v_and_b32 %s, 1, %s", v(t2), v(t2))
    A("s_mov_b32 s3, 144")
    A("v_mad_u32_u24 %s, %s, s3, %s", v(t3), v(t2), v(t3))
    A("v_lshlrev_b32 %s, 4, %s", v(t3), v(t3))
    A("v_add_u32 %s, %s, %s", v(t3), s(SLB), v(t3))
    A("s_and_saveexec_b64 s[36:37], vcc")
    A("ds_write_b128 %s, %s", v(t3), v(Z, 4))
    A("s_mov_b64 exec, s[36:37]")
    C = R.alloc(12, 4)
    for rd_ in range(2):
        A("s_waitcnt vmcnt(%d)", 3 - 2 * rd_)
        h = HR + 6 * rd_
        off = rd_ * 16 * 64 * 16 // 16
        off = rd_ * 1024
        for k in range(4):
            A("v_alignbit_b32 %s, %s, %s, 16", v(C + k), v(h + k + 1), v(h + k))
        for k in range(4):
            A("v_mov_b32 %s, %s", v(C + 4 + k), v(h + 1 + k))
        for k in range(4):
            A("v_alignbit_b32 %s, %s, %s, 16", v(C + 8 + k), v(h + k + 2), v(h + k + 1))
        for c in range(3):
            A("ds_write_b128 %s, %s offset:%d", v(la), v(C + 4 * c, 4), off + 16 * c)
        A("ds_write_b128 %s, %s offset:%d", v(la), v(h + 2, 4), off + 48)
        if rd_ == 0:
            A("s_waitcnt lgkmcnt(0)")
    ab = R.alloc(); bb = R.alloc()
    A("v_lshrrev_b32 %s, 5, %s", v(t0), v(vl))
    A("s_mov_b32 s3, 289")
    A("v_mul_u32_u24 %s, s3, %s", v(t0), v(t0))
    A("v_bfe_u32 %s, %s, 4, 1", v(t1), v(vl))
    A("s_mov_b32 s3, 144")
    A("v_mad_u32_u24 %s, %s, s3, %s", v(t0), v(t1), v(t0))
    A("v_and_b32 %s, 15, %s", v(t1), v(vl))
    A("v_add_u32 %s, %s, %s", v(t0), v(t1), v(t0))
    A("s_lshl_b32 s3, %s, 3", s(SHF))
    A("v_add_u32 %s, s3, %s", v(t0), v(t0))
    A("v_lshlrev_b32 %s, 4, %s", v(t0), v(t0))
    A("v_add_u32 %s, %s, %s", v(ab), s(SLB), v(t0))
    A("v_lshrrev_b32 %s, 4, %s", v(t0), v(vl))
    A("v_lshlrev_b32 %s, 1, %s", v(t0), v(t0))
    A("v_sub_u32 %s, %s, %s", v(t0), v(t0), v(t1))
    A("s_lshl_b32 s3, %s, 5", s(SHF))
    A("s_add_u32 s3, s3, 15")
    A("v_add_u32 %s, s3, %s", v(t0), v(t0))
    A("v_lshlrev_b32 %s, 4, %s", v(t0), v(t0))
    A("s_add_u32 s3, %s, %d", s(SLB), CV_A)
    A("v_add_u32 %s, s3, %s", v(bb), v(t0))
    A("s_waitcnt vmcnt(0) lgkmcnt(0)")
    A("s_barrier")
    FA = [R.alloc(32, 4), R.alloc(32, 4)]
    FB = [R.alloc(32, 4), R.alloc(32, 4)]
    ACC = R.alloc(32, 4)
    def reads(rho):
        out = []
        st = rho & 1
        for c in range(8):
            out.append("ds_read_b128 %s, %s offset:%d" % (v(FA[st] + 4 * c, 4), v(ab), ((rho & 1) * 578 + 16 * c + 4 * (rho >> 1)) * 16))
            out.append("ds_read_b128 %s, %s offset:%d" % (v(FB[st] + 4 * c, 4), v(bb), (448 - 64 * c + 8 * rho) * 16))
        return out
    for r_ in reads(0):
        A(r_)
    for rho in range(4):
        A("s_waitcnt lgkmcnt(0)")
        nxt = reads(rho + 1) if rho < 3 else []
        st = rho & 1
        cnt = 0
        for c in range(8):
            for aa in range(c, 8):
                first = (rho == 0 and c == 0)
                A("v_mfma_f32_16x16x32_bf16 %s, %s, %s, %s", v(ACC + 4 * aa, 4), v(FA[st] + 4 * c, 4), v(FB[st] + 4 * (aa - c), 4), "0" if first else v(ACC + 4 * aa, 4))
                cnt += 1
                if nxt and cnt % 2 == 0:
                    A(nxt.pop(0))
        assert not nxt
    A("s_nop 7")
    A("s_cmp_eq_u32 %s, 0", s(SHF))
    A("s_cbranch_scc1 cv_noswap")
    for i in range(16):
        A("v_swap_b32 %s, %s", v(ACC + i), v(ACC + 16 + i))
    A.label("cv_noswap")
    A("s_lshl_b32 s3, %s, 12", s(SW))
    A("s_add_u32 s3, s3, %d", CV_X)
    A("v_lshl_add_u32 %s, %s, 4, s3", v(t0), v(vl))
    A("s_xor_b32 s3, s3, 4096") if (CV_X % 8192 == 0) else None
    if CV_X % 8192 != 0:
        A("s_xor_b32 s38, %s, 1", s(SW))
        A("s_lshl_b32 s3, s38, 12")
        A("s_add_u32 s3, s3, %d", CV_X)
    A("v_lshl_add_u32 %s, %s, 4, s3", v(t1), v(vl))
    for i in range(4):
        A("ds_write_b128 %s, %s offset:%d", v(t0), v(ACC + 16 + 4 * i, 4), 1024 * i)
    A("s_lshl_b32 s3, %s, 8", s(SHF))
    A("s_sub_u32 s3, %d, s3", 511 - 192)
    A("v_sub_u32 %s, s3, %s", v(t2), v(vl))
    A("v_lshlrev_b32 %s, 4, %s", v(t2), v(t2))
    A("s_add_u32 s3, %s, %d", s(SLB), CV_A)
    A("v_add_u32 %s, s3, %s", v(t2), v(t2))
    KVv = FA[0]
    for ap in range(4):
        A("ds_read_b64 %s, %s offset:%d", v(KVv + 2 * ap, 2), v(t2), (3 - ap) * 1024)
    A("s_waitcnt lgkmcnt(0)")
    A("s_barrier")
    PX = FB[0]
    for i in range(4):
        A("ds_read_b128 %s, %s offset:%d", v(PX + 4 * i, 4), v(t1), 1024 * i)
    A("s_mov_b32 s38, 0xffff0000")
    SM = 38
    DD = R.alloc(2, 2)
    A("v_lshlrev_b32 %s, 16, %s", v(DD), v(DV))
    A("v_lshlrev_b32 %s, 16, %s", v(DD + 1), v(DV))
    KD = FA[1]
    tmp = R.alloc()
    for ap in range(4):
        k = KD + 4 * ap
        A("v_and_b32 %s, %s, %s", v(k + 0), s(SM), v(KVv + 2 * ap + 1))
        A("v_lshlrev_b32 %s, 16, %s", v(k + 1), v(KVv + 2 * ap + 1))
        A("v_and_b32 %s, %s, %s", v(k + 2), s(SM), v(KVv + 2 * ap))
        A("v_lshlrev_b32 %s, 16, %s", v(k + 3), v(KVv + 2 * ap))
        for hh in range(2):
            A("v_pk_mul_f32 %s, %s, %s", v(k + 2 * hh, 2), v(k + 2 * hh, 2), v(DD, 2))
            round_pair(A, k + 2 * hh, tmp, SM)
    A("s_waitcnt lgkmcnt(0)")
    O = FB[1]
    A("s_lshl_b32 s3, %s, 11", s(SHF))
    A("s_add_u32 s3, s3, %s", s(SROW))
    A("s_add_u32 s3, s3, 0x%x", YT)
    A("v_lshlrev_b32 %s, 3, %s", v(t0), v(vl))
    for ap in range(4):
        for hh in range(2):
            p = ACC + 4 * ap + 2 * hh
            A("v_pk_add_f32 %s, %s, %s", v(p, 2), v(p, 2), v(PX + 4 * ap + 2 * hh, 2))
            round_pair(A, p, tmp, SM)
            A("v_pk_add_f32 %s, %s, %s", v(p, 2), v(p, 2), v(KD + 4 * ap + 2 * hh, 2))
            A("v_cvt_pk_bf16_f32 %s, %s, %s", v(O + 2 * ap + hh), v(p), v(p + 1))
        A("buffer_store_dwordx2 %s, %s, s[28:31], s3 offen offset:%d", v(O + 2 * ap, 2), v(t0), 512 * ap)
    A.label("cv_done")
    A("s_endpgm")
    assert R.hi <= 256, R.hi
    return kernel_desc(name, R.hi, 0, 64)

G2_Y = 4 * 8 * 4096
G2_LDS = G2_Y + 8192
def gen_g2(A):
    name = "g2_kernel"
    kernel_header(A, name)
    A("s_cmp_ge_u32 s2, 256")
    A("s_cbranch_scc1 g2_done")
    A("s_load_dwordx2 s[4:5], s[0:1], %d", KA_Q)
    A("s_load_dwordx4 s[8:11], s[0:1], %d", KA_W2)
    A("s_load_dwordx2 s[6:7], s[0:1], %d", KA_WS)
    A("s_load_dwordx2 s[44:45], s[0:1], %d", KA_OUT)
    R = Regs(1)
    vl = R.alloc(); t0 = R.alloc(); t1 = R.alloc(); t2 = R.alloc(); t3 = R.alloc()
    A("v_lshrrev_b32 %s, 6, v0", v(t0))
    A("v_and_b32 %s, 63, v0", v(vl))
    A("v_readfirstlane_b32 s12, %s", v(t0))
    A("s_and_b32 s13, s2, 7")
    A("s_lshr_b32 s14, s2, 3")
    A("s_lshl_b32 s13, s13, 2")
    A("s_and_b32 s3, s14, 3")
    A("s_add_u32 s13, s13, s3")
    A("s_lshr_b32 s14, s14, 2")
    SW, SB, SN = 12, 13, 14
    wa = R.alloc(4)
    A("v_lshrrev_b32 %s, 3, %s", v(t0), v(vl))
    A("v_lshlrev_b32 %s, 12, %s", v(t0), v(t0))
    A("v_and_b32 %s, 7, %s", v(t1), v(vl))
    A("v_lshl_add_u32 %s, %s, 4, %s", v(t0), v(t1), v(t0))
    for n in range(4):
        A("v_xor_b32 %s, %d, %s", v(wa + n), n * 32, v(t0))
    ha = R.alloc(4)
    A("v_lshlrev_b32 %s, 4, %s", v(ha), v(vl))
    for q in range(1, 4):
        A("v_add_u32 %s, %d, %s", v(ha + q), 4096 * q, v(ha))
    rb = R.alloc(4)
    A("v_bfe_u32 %s, %s, 2, 2", v(t0), v(vl))
    A("v_lshlrev_b32 %s, 10, %s", v(t1), v(t0))
    A("v_lshl_add_u32 %s, %s, 5, %s", v(t1), v(t0), v(t1))
    A("v_lshrrev_b32 %s, 4, %s", v(t2), v(vl))
    A("v_lshl_add_u32 %s, %s, 7, %s", v(t1), v(t2), v(t1))
    A("v_and_b32 %s, 3, %s", v(t2), v(vl))
    A("v_lshl_add_u32 %s, %s, 3, %s", v(t1), v(t2), v(t1))
    A("s_lshl_b32 s15, %s, 15", s(SW))
    A("v_add_u32 %s, s15, %s", v(t1), v(t1))
    for dt in range(4):
        A("v_xor_b32 %s, %d, %s", v(rb + dt), dt * 32, v(t1))
    A("s_waitcnt lgkmcnt(0)")
    srd(A, 16, 4, 0x200000)
    srd(A, 20, 8, 1792 * 1024)
    srd(A, 24, 10, 1024)
    srd(A, 28, 6, WS_BYTES)
    srd(A, 48, 44, 0x200000)
    A("v_lshrrev_b32 %s, 3, %s", v(t0), v(vl))
    A("v_lshlrev_b32 %s, 12, %s", v(t0), v(t0))
    A("v_and_b32 %s, 7, %s", v(t1), v(vl))
    A("v_lshl_add_u32 %s, %s, 4, %s", v(t0), v(t1), v(t0))
    A("s_lshl_b32 s3, %s, 18", s(SN))
    A("s_lshl_b32 s32, %s, 16", s(SW))
    A("s_add_u32 s3, s3, s32")
    A("s_lshl_b32 s32, %s, 7", s(SB))
    A("s_add_u32 s3, s3, s32")
    A("s_add_u32 s3, s3, 0x%x", YT)
    A("s_lshl_b32 s32, %s, 11", s(SW))
    A("s_add_u32 m0, s32, %d", G2_Y)
    A("s_nop 0")
    A("buffer_load_dwordx4 %s, s[28:31], s3 offen lds", v(t0))
    A("s_add_u32 m0, s32, %d", G2_Y + 1024)
    A("s_add_u32 s3, s3, 0x8000")
    A("buffer_load_dwordx4 %s, s[28:31], s3 offen lds", v(t0))
    XE = R.alloc(8, 4); STt = R.alloc(2, 2); B2 = R.alloc(8, 4); xo = R.alloc()
    A("v_and_b32 %s, 15, %s", v(t0), v(vl))
    A("s_lshl_b32 s3, %s, 6", s(SB))
    A("s_lshl_b32 s32, %s, 4", s(SW))
    A("s_add_u32 s3, s3, s32")
    A("v_add_u32 %s, s3, %s", v(t0), v(t0))
    A("v_lshrrev_b32 %s, 4, %s", v(t1), v(vl))
    A("v_lshlrev_b32 %s, 5, %s", v(t1), v(t1))
    A("s_lshl_b32 s3, %s, 7", s(SN))
    A("v_add_u32 %s, s3, %s", v(t1), v(t1))
    A("v_lshl_add_u32 %s, %s, 10, %s", v(xo), v(t0), v(t1))
    A("buffer_load_dwordx4 %s, %s, s[16:19], 0 offen", v(XE, 4), v(xo))
    A("buffer_load_dwordx4 %s, %s, s[16:19], 0 offen offset:16", v(XE + 4, 4), v(xo))
    A("buffer_load_dwordx4 %s, %s, s[24:27], 0 offen", v(B2, 4), v(t1))
    A("buffer_load_dwordx4 %s, %s, s[24:27], 0 offen offset:16", v(B2 + 4, 4), v(t1))
    A("v_lshlrev_b32 %s, 3, %s", v(t0), v(t0))
    A("s_mov_b32 s3, 0x%x", ST)
    A("buffer_load_dwordx2 %s, %s, s[28:31], s3 offen", v(STt, 2), v(t0))
    A("s_mul_i32 s36, %s, %d", s(SB), 4 * 57344)
    A("s_mul_i32 s3, %s, 14336", s(SW))
    A("s_add_u32 s36, s36, s3")
    A("s_add_u32 s36, s36, 0x%x", HF)
    for tt in range(1, 4):
        A("s_add_u32 %s, %s, 57344", s(36 + tt), s(35 + tt))
    A("s_mul_i32 s40, %s, %d", s(SW), 14 * 32 * 1024)
    A("s_lshl_b32 s3, %s, 7", s(SN))
    A("s_add_u32 s40, s40, s3")
    def loads(ks):
        out = []
        out.append("s_add_u32 m0, s15, %d" % ((ks & 7) * 4096))
        out.append("s_add_u32 s41, s40, %d" % (ks * 32768))
        for n in range(4):
            out.append("buffer_load_dwordx4 %s, s[20:23], s41 offen offset:%d lds" % (v(wa + n), 1024 * n))
        for tt in range(4):
            out.append("buffer_load_dwordx4 %s, %s, s[28:31], %s offen offset:%d" % (a((ks * 4 + tt) * 4, 4), v(ha + (ks >> 2)), s(36 + tt), 1024 * (ks & 3)))
        return out
    WF = [R.alloc(16, 4), R.alloc(16, 4)]
    ACC = R.alloc(64, 4)
    def reads(ks):
        out = []
        for dt in range(4):
            for i in range(2):
                out.append("ds_read_b64_tr_b16 %s, %s offset:%d" % (v(WF[ks & 1] + 4 * dt + 2 * i, 2), v(rb + dt), (ks & 7) * 4096 + i * 512))
        return out
    PD = 7
    for ks in range(PD):
        for x_ in loads(ks):
            A(x_)
    A("s_waitcnt vmcnt(%d)", 8 * (PD - 1))
    for x_ in reads(0):
        A(x_)
    for ks in range(14):
        issued = min(14, ks + PD)
        if ks + 1 < 14:
            A("s_waitcnt vmcnt(%d) lgkmcnt(0)", 8 * (issued - (ks + 2)))
            rds = reads(ks + 1)
        else:
            A("s_waitcnt lgkmcnt(0)")
            rds = []
        lds_ = loads(ks + PD) if ks + PD < 14 else []
        fill = rds + lds_
        for dt in range(4):
            for tt in range(4):
                acc = ACC + (dt * 4 + tt) * 4
                A("v_mfma_f32_16x16x32_bf16 %s, %s, %s, %s", v(acc, 4), v(WF[ks & 1] + 4 * dt, 4), a((ks * 4 + tt) * 4, 4), "0" if ks == 0 else v(acc, 4))
                if fill:
                    x_ = fill.pop(0)
                    A(x_)
                    if x_.startswith("s_add") and fill:
                        A(fill.pop(0))
        while fill:
            A(fill.pop(0))
    A("s_barrier")
    A("v_and_b32 %s, 15, %s", v(t0), v(vl))
    A("s_mov_b32 s3, 272")
    A("v_mul_u32_u24 %s, s3, %s", v(t0), v(t0))
    A("v_lshrrev_b32 %s, 4, %s", v(t1), v(vl))
    A("v_lshl_add_u32 %s, %s, 4, %s", v(t2), v(t1), v(t0))
    A("s_mul_i32 s3, %s, %d", s(SW), 64 * 272)
    A("v_add_u32 %s, s3, %s", v(t2), v(t2))
    A("v_lshl_add_u32 %s, %s, 6, %s", v(t3), v(t1), v(t0))
    A("s_mul_i32 s3, %s, %d", s(SW), 16 * 272)
    A("v_add_u32 %s, s3, %s", v(t3), v(t3))
    for dt in range(4):
        for tt in range(4):
            A("ds_write_b128 %s, %s offset:%d", v(t2), v(ACC + (dt * 4 + tt) * 4, 4), tt * 16 * 272 + dt * 64)
    A("v_bfe_u32 %s, %s, 2, 2", v(t0), v(vl))
    A("v_lshl_add_u32 %s, %s, 4, %s", v(t0), v(t1), v(t0))
    A("v_lshlrev_b32 %s, 7, %s", v(t0), v(t0))
    A("v_and_b32 %s, 3, %s", v(t1), v(vl))
    A("v_lshl_add_u32 %s, %s, 3, %s", v(t0), v(t1), v(t0))
    A("s_lshl_b32 s3, %s, 5", s(SW))
    A("s_add_u32 s3, s3, %d", G2_Y)
    A("v_add_u32 %s, s3, %s", v(t0), v(t0))
    A("s_waitcnt lgkmcnt(0)")
    A("s_barrier")
    for w in range(4):
        for j in range(4):
            A("ds_read_b128 %s, %s offset:%d", v(ACC + (w * 4 + j) * 4, 4), v(t3), w * 64 * 272 + j * 16)
    YV = WF[0]
    for j in range(4):
        A("ds_read_b64_tr_b16 %s, %s offset:%d", v(YV + 2 * j, 2), v(t0), j * 512)
    A("s_mov_b32 s42, 0xffff0000")
    SM = 42
    A("s_mov_b32 s43, 0xbfb8aa3b")
    tmp = R.alloc()
    XF = R.alloc(16, 2); XN = R.alloc(16, 2); BF = R.alloc(16, 2); YF = R.alloc(16, 2); G = R.alloc(2, 2); O = R.alloc(8, 4)
    for i in range(8):
        unpack_pair(A, XF + 2 * i, XE + i, SM)
        unpack_pair(A, BF + 2 * i, B2 + i, SM)
        A("v_pk_add_f32 %s, %s, %s op_sel_hi:[1,0] neg_lo:[0,1] neg_hi:[0,1]", v(XN + 2 * i, 2), v(XF + 2 * i, 2), v(STt, 2))
        round_pair(A, XN + 2 * i, tmp, SM)
        A("v_pk_mul_f32 %s, %s, %s op_sel:[0,1] op_sel_hi:[1,1]", v(XN + 2 * i, 2), v(XN + 2 * i, 2), v(STt, 2))
        round_pair(A, XN + 2 * i, tmp, SM)
    A("s_waitcnt lgkmcnt(0)")
    for i in range(8):
        p = ACC + 2 * i
        for w in range(1, 4):
            A("v_pk_add_f32 %s, %s, %s", v(p, 2), v(p, 2), v(ACC + 16 * w + 2 * i, 2))
        round_pair(A, p, tmp, SM)
        A("v_pk_add_f32 %s, %s, %s", v(p, 2), v(p, 2), v(BF + 2 * i, 2))
        round_pair(A, p, tmp, SM)
        A("v_mul_f32 %s, s43, %s", v(G), v(p))
        A("v_mul_f32 %s, s43, %s", v(G + 1), v(p + 1))
        A("v_exp_f32 %s, %s", v(G), v(G))
        A("v_exp_f32 %s, %s", v(G + 1), v(G + 1))
        A("s_nop 0")
        A("v_pk_add_f32 %s, %s, 1.0 op_sel_hi:[1,0]", v(G, 2), v(G, 2))
        A("v_rcp_f32 %s, %s", v(G), v(G))
        A("v_rcp_f32 %s, %s", v(G + 1), v(G + 1))
        A("s_nop 0")
        A("v_pk_mul_f32 %s, %s, %s", v(G, 2), v(G, 2), v(p, 2))
        round_pair(A, G, tmp, SM)
        unpack_pair(A, YF + 2 * i, YV + i, SM)
        A("v_pk_mul_f32 %s, %s, %s", v(XN + 2 * i, 2), v(XN + 2 * i, 2), v(YF + 2 * i, 2))
        round_pair(A, XN + 2 * i, tmp, SM)
        A("v_pk_mul_f32 %s, %s, %s", v(G, 2), v(G, 2), v(XN + 2 * i, 2))
        round_pair(A, G, tmp, SM)
        A("v_pk_add_f32 %s, %s, %s", v(G, 2), v(G, 2), v(XF + 2 * i, 2))
        A("v_cvt_pk_bf16_f32 %s, %s, %s", v(O + i), v(G), v(G + 1))
    A("buffer_store_dwordx4 %s, %s, s[48:51], 0 offen", v(O, 4), v(xo))
    A("buffer_store_dwordx4 %s, %s, s[48:51], 0 offen offset:16", v(O + 4, 4), v(xo))
    A.label("g2_done")
    A("s_endpgm")
    assert R.hi <= 256, R.hi
    return kernel_desc(name, 256, 224, 64)

def main(path):
    hdr = open("recurrent_scan__ssm_conv_h3__mixer_channel_mlp__prompt.s.ref").read().split("; Override launch")[0]
    A = Asm()
    A.raw(hdr.rstrip("\n"))
    A.raw("; @launch kernel=p0_kernel grid=(256,1,1) block=(256,1,1) lds=0")
    A.raw("; @launch kernel=g1_kernel grid=(256,1,1) block=(256,1,1) lds=%d" % G1_LDS)
    A.raw("; @launch kernel=cv_kernel grid=(256,1,1) block=(256,1,1) lds=%d" % CV_LDS)
    A.raw("; @launch kernel=g2_kernel grid=(256,1,1) block=(256,1,1) lds=%d" % G2_LDS)
    A.raw('.amdgcn_target "amdgcn-amd-amdhsa--gfx950"')
    A.raw(".text")
    descs = [gen_p0(A), gen_g1(A), gen_cv(A), gen_g2(A)]
    A.raw('.section .rodata,"a"')
    for d in descs:
        A.raw(".p2align 6")
        A.raw(d)
    open(path, "w").write(A.text())

if __name__ == "__main__":
    main(sys.argv[1])
```
